```python
import torch

def _softmax(x, axis=-1):
    return torch.softmax(x, dim=axis)
def _gelu(x):
    return torch.nn.functional.gelu(x, approximate="tanh")
def _silu(x):
    return torch.nn.functional.silu(x)
def _sigmoid(x):
    return torch.sigmoid(x)
def _layernorm(x, axis=-1, eps=1e-5):
    m = x.mean(dim=axis, keepdim=True)
    v = x.var(dim=axis, keepdim=True, unbiased=False)
    return (x - m) / torch.sqrt(v + eps)
def _scatter_add(tgt, idx, src, axis=0):
    return tgt.clone().index_add_(axis, idx, src)
def _segment_sum(src, seg, n):
    out = torch.zeros((n,) + src.shape[1:], dtype=src.dtype)
    return out.index_add_(0, seg, src)
def _pad(x, pw):
    flat = tuple(v for pair in reversed(pw) for v in pair)
    return torch.nn.functional.pad(x, flat)

kernel_name = 'gated_mix__mha_block__ssm_conv_s4__prompt'

def setup_inputs():

    _w = (lambda a: (lambda t: t.to(torch.bfloat16) if t.is_floating_point() else t)(torch.as_tensor(a)))
    def _A_setup():
        B, S, D, H = 1, 2048, 448, 16
        return {
            "x": _w((lambda *s: torch.randn(*s, dtype=torch.bfloat16) * 0.05)(B, S, D)),
            "wqkv": _w((lambda *s: torch.randn(*s, dtype=torch.bfloat16) * 0.8)(D, 3 * D)),
            "wo": _w((lambda *s: torch.randn(*s, dtype=torch.bfloat16) * 0.05)(D, D)),
        }
    _A_in = _A_setup()

    def _B_setup():
        B, L, D, N = 1, 2048, 448, 256
        A_re = -(lambda _x: torch.exp(torch.as_tensor(_x)))((lambda *s: torch.randn(*s, dtype=torch.bfloat16) * 6.4)(D, N))
        A_im = torch.pi * (lambda *s: torch.randn(*s, dtype=torch.bfloat16) * 0.1)(D, N)
        B_re = (lambda *s: torch.randn(*s, dtype=torch.bfloat16) * 0.2)(D, N)
        B_im = (lambda *s: torch.randn(*s, dtype=torch.bfloat16) * 0.2)(D, N)
        C_re = (lambda *s: torch.randn(*s, dtype=torch.bfloat16) * 0.2)(D, N)
        C_im = (lambda *s: torch.randn(*s, dtype=torch.bfloat16) * 0.2)(D, N)
        log_dt = (lambda *s: torch.randn(*s, dtype=torch.bfloat16) * 0.1)(D) * 0.5 - 4.0
        Dskip = (lambda *s: torch.randn(*s, dtype=torch.bfloat16) * 0.1)(D)
        return {
            "u": _w((lambda *s: torch.randn(*s, dtype=torch.bfloat16) * 0.05)(B, L, D)),
            "A_re": _w(A_re),
            "A_im": _w(A_im),
            "B_re": _w(B_re),
            "B_im": _w(B_im),
            "C_re": _w(C_re),
            "C_im": _w(C_im),
            "log_dt": _w(log_dt),
            "Dskip": _w(Dskip),
        }
    _B_in = _B_setup()

    return {
        "A_x": _A_in["x"],
        "A_wqkv": _A_in["wqkv"],
        "A_wo": _A_in["wo"],
        "B_u": _B_in["u"],
        "B_A_re": _B_in["A_re"],
        "B_A_im": _B_in["A_im"],
        "B_B_re": _B_in["B_re"],
        "B_B_im": _B_in["B_im"],
        "B_C_re": _B_in["C_re"],
        "B_C_im": _B_in["C_im"],
        "B_log_dt": _B_in["log_dt"],
        "B_Dskip": _B_in["Dskip"],
        "gate_w": _w((lambda *s: torch.randn(*s, dtype=torch.bfloat16) * 0.05)(448) * 16.0),
    }

def reference(A_x, A_wqkv, A_wo, B_u, B_A_re, B_A_im, B_B_re, B_B_im, B_C_re, B_C_im, B_log_dt, B_Dskip, gate_w):
    def _A_ref(x, wqkv, wo):
        B, S, D = x.shape
        H = 16
        Dh = D // H
        qkv = (lambda x, *d: x.permute(*d))((x @ wqkv).reshape(B, S, 3, H, Dh), 2, 0, 3, 1, 4)
        q, k, v = qkv[0], qkv[1], qkv[2]
        scores = torch.einsum("bhqd,bhkd->bhqk", q, k) * (Dh ** -0.5)
        p = _softmax(scores, axis=-1)
        o = torch.einsum("bhqk,bhkd->bhqd", p, v)
        return (lambda x, *d: x.permute(*d))(o, 0, 2, 1, 3).reshape(B, S, D) @ wo

    def _B_ref(u, A_re, A_im, B_re, B_im, C_re, C_im, log_dt, Dskip):
        Bsz, L, D = u.shape
        dt = torch.exp(log_dt)[:, None]
        A = A_re + 1j * A_im
        Bc = B_re + 1j * B_im
        Cc = C_re + 1j * C_im
        logdA = dt * A
        dB = dt * Bc
        l = (lambda x, dt: x.to(dt))(torch.arange(L), A_re.dtype)
        P = torch.exp(logdA[:, :, None] * l[None, None, :])
        K = torch.einsum("dn,dnl,dn->dl", Cc, P, dB).real
        L2 = 2 * L
        Kp = _pad(K, ((0, 0), (0, L)))
        up = (lambda x, *d: x.permute(*d))(u, 0, 2, 1)
        up = _pad(up, ((0, 0), (0, 0), (0, L)))
        Kf = (lambda x, axes=(-2,-1): torch.fft.rfft2(x.float(), dim=axes))(Kp[:, None, :], axes=(-2, -1))
        Uf = (lambda x, axes=(-2,-1): torch.fft.rfft2(x.float(), dim=axes))(up[:, :, None, :], axes=(-2, -1))
        Yf = Uf * Kf[None, :, :, :]
        y = (lambda x, s, axes=(-2,-1): torch.fft.irfft2(x, s=s, dim=axes).to(torch.bfloat16))(Yf, (1, L2), axes=(-2, -1))[:, :, 0, :L]
        y = (lambda x, *d: x.permute(*d))(y, 0, 2, 1) + u * Dskip[None, None, :]
        return y

    x = A_x
    g = _sigmoid((x * gate_w).sum(-1, keepdims=True))
    a = _A_ref(x, A_wqkv, A_wo)
    b = _B_ref(x, B_A_re, B_A_im, B_B_re, B_B_im, B_C_re, B_C_im, B_log_dt, B_Dskip)
    return g * a + (1 - g) * b
```

```python
import re

TRANS = ("v_exp_f32", "v_log_f32", "v_rcp_f32", "v_rsq_f32", "v_sqrt_f32", "v_sin_f32", "v_cos_f32",
         "v_exp_f16", "v_log_f16", "v_rcp_f16", "v_rcp_iflag_f32")

def _regs(tok):
    tok = tok.strip()
    neg = tok.lstrip("-")
    m = re.fullmatch(r"(?:abs\()?\|?([vsa])(\d+)\|?\)?", neg)
    if m: return {(m.group(1), int(m.group(2)))}
    m = re.fullmatch(r"(?:abs\()?([vsa])\[(\d+):(\d+)\]\)?", neg)
    if m: return {(m.group(1), i) for i in range(int(m.group(2)), int(m.group(3)) + 1)}
    if neg in ("vcc", "vcc_lo", "vcc_hi"): return {("vcc", 0)}
    if neg in ("exec", "exec_lo", "exec_hi"): return {("exec", 0)}
    if neg == "m0": return {("m0", 0)}
    return set()

class Ins:
    __slots__ = ("text", "op", "w", "r", "cls", "srcc", "ab", "passes", "nopn", "is_label", "dpp", "stdata", "lds_dma")
    def __init__(self, text):
        self.text = text
        t = text.split(";")[0].strip()
        self.is_label = t.endswith(":")
        self.w = set(); self.r = set(); self.srcc = set(); self.ab = set(); self.passes = 0; self.nopn = 1
        self.stdata = set(); self.dpp = False; self.lds_dma = False
        if self.is_label or not t or t.startswith("."):
            self.op = None; self.cls = "none"; self.nopn = 0; return
        parts = t.split(None, 1)
        op = parts[0]; self.op = op
        rest = parts[1] if len(parts) > 1 else ""
        ops = []; cur = ""; depth = 0
        for ch in rest:
            if ch in "[(": depth += 1
            if ch in "])": depth -= 1
            if ch == "," and depth == 0: ops.append(cur); cur = ""
            else: cur += ch
        if cur.strip(): ops.append(cur)
        mods = ""
        if ops:
            l = ops[-1].strip().split(None, 1)
            ops[-1] = l[0]
            mods = l[1] if len(l) > 1 else ""
        R = [_regs(o) for o in ops]
        allr = lambda lst: set().union(*lst) if lst else set()
        base = re.sub(r"_(e32|e64|dpp|sdwa)$", "", op)
        if op.startswith("v_mfma"):
            self.cls = "mfma"; self.w = R[0]; self.ab = R[1] | R[2]; self.srcc = R[3]; self.r = self.ab | self.srcc
            self.passes = 8 if "32x32" in op else 4
        elif op.startswith("v_"):
            self.cls = "trans" if base in TRANS else "valu"
            self.dpp = ("dpp" in op) or ("quad_perm" in mods) or ("row_" in mods) or ("wave_" in mods)
            if base.startswith("v_cmpx"):
                self.w = R[0] | {("exec", 0)}; self.r = allr(R[1:])
            elif base.startswith("v_cmp"):
                self.w = R[0]; self.r = allr(R[1:])
            elif base.startswith("v_permlane") and "swap" in base:
                self.cls = "permlane"; self.w = R[0] | R[1]; self.r = R[0] | R[1]
            elif base in ("v_add_co_u32", "v_sub_co_u32", "v_subrev_co_u32", "v_addc_co_u32", "v_subb_co_u32", "v_div_scale_f32", "v_mad_u64_u32"):
                self.w = R[0] | R[1]; self.r = allr(R[2:])
            elif base in ("v_readfirstlane_b32", "v_readlane_b32"):
                self.cls = "readlane"; self.w = R[0]; self.r = allr(R[1:])
            elif base == "v_nop":
                pass
            else:
                self.w = R[0]; self.r = allr(R[1:])
                if base in ("v_fmac_f32", "v_pk_fmac_f16", "v_dot2c_f32_bf16", "v_writelane_b32", "v_dot2c_f32_f16") or self.dpp or "sdwa" in op or "op_sel" in mods and "cvt" in base:
                    self.r |= R[0]
        elif op.startswith("ds_"):
            self.cls = "ds"
            if op.startswith("ds_read") or op.startswith("ds_bpermute") or op.startswith("ds_permute") or op.startswith("ds_swizzle") or "_rtn" in op:
                self.w = R[0]; self.r = allr(R[1:])
            else:
                self.r = allr(R)
        elif op.startswith("buffer_") or op.startswith("global_"):
            self.cls = "vmem"
            islds = re.search(r"\blds\b", mods) is not None or "_lds_" in op
            if islds:
                self.lds_dma = True; self.r = allr(R) | {("m0", 0)}
            elif "load" in op:
                self.w = R[0]; self.r = allr(R[1:])
            else:
                self.r = allr(R)
                if op.endswith("x4") or op.endswith("x3"):
                    self.stdata = R[0] if op.startswith("buffer_") else R[1]
                if "atomic" in op and "sc0" in mods: self.w = R[0]
        elif op == "s_nop":
            self.cls = "nop"; self.nopn = int(ops[0], 0) + 1
        elif op.startswith("s_"):
            self.cls = "salu"
            if op.startswith("s_cmp") or op.startswith("s_cbranch") or op in ("s_branch", "s_barrier", "s_waitcnt", "s_endpgm", "s_sleep", "s_setprio", "s_bitcmp1_b32", "s_bitcmp0_b32"):
                self.r = allr(R)
            elif "saveexec" in op:
                self.w = R[0] | {("exec", 0)}; self.r = allr(R[1:])
            else:
                self.w = R[0] if R else set(); self.r = allr(R[1:])
        else:
            raise ValueError("unknown instr " + text)

VALUISH = ("valu", "trans", "permlane", "readlane")

def required_gap(p, c):
    need = 0
    vw = {x for x in p.w if x[0] in "va" and x[0] != "vcc"}
    sw = {x for x in p.w if x[0] in ("s", "vcc")}
    if p.cls in VALUISH:
        if c.cls == "mfma" and vw & c.r: need = max(need, 2)
        if c.cls == "permlane" and vw & c.r: need = max(need, 2)
        if c.dpp and vw & c.r: need = max(need, 2)
        if c.cls == "readlane" and vw & c.r: need = max(need, 1)
        if p.cls == "trans" and c.cls in VALUISH + ("mfma",) and c.cls != "trans" and vw & c.r: need = max(need, 1)
        if p.cls == "trans" and c.cls in ("vmem", "ds") and vw & c.r: need = max(need, 1)
        if sw:
            if c.cls in VALUISH and sw & c.r: need = max(need, 4 if c.cls == "readlane" or c.op.startswith("v_writelane") or c.op.startswith("v_div_fmas") else 2)
            if c.cls == "vmem" and sw & c.r: need = max(need, 5)
            if c.cls == "salu" and sw & c.r: need = max(need, 2)
        if ("exec", 0) in p.w:
            if c.cls in ("mfma", "readlane", "permlane"): need = max(need, 4)
            if c.dpp: need = max(need, 5)
            if c.cls in VALUISH and ("exec", 0) in c.r: need = max(need, 2)
        if "sdwa" in p.op or ("op_sel" in p.text and not p.op.startswith("v_pk")):
            if c.cls in VALUISH and vw & (c.r | c.w): need = max(need, 1)
    if p.cls == "mfma":
        n = p.passes
        tab_ov = {4: 6, 8: 10}[n]; tab_ab = {4: 8, 8: 12}[n]; tab_war = {4: 3, 8: 7}[n]
        if c.cls == "mfma":
            if p.w & c.ab: need = max(need, tab_ab)
            if p.w & c.srcc:
                if not (p.w == c.srcc and c.passes == p.passes): need = max(need, tab_ov)
            elif p.w & c.w: need = max(need, tab_ov)
        elif c.cls in VALUISH:
            if p.w & (c.r | c.w): need = max(need, tab_ab)
            if p.srcc & c.w: need = max(need, tab_war)
        elif c.cls in ("vmem", "ds"):
            if p.w & (c.r | c.w): need = max(need, tab_ab)
    if p.cls == "salu" and ("m0", 0) in p.w and (c.lds_dma or (c.op or "").endswith("addtid_b32")): need = max(need, 1)
    if p.stdata:
        if c.cls in VALUISH + ("mfma",) and p.stdata & c.w: need = max(need, 2)
        elif p.stdata & c.w: need = max(need, 1)
    return need

class Asm:
    def __init__(self):
        self.lines = []
        self._lab = 0
    def __call__(self, text):
        for l in text.split("\n"):
            l = l.strip()
            if l: self.lines.append(l)
    def label(self, prefix="L"):
        self._lab += 1
        return f"{prefix}_{self._lab}"
    def finish(self, verbose=False):
        out = []
        WINDOW = 14
        ninserted = 0
        for l in self.lines:
            c = Ins(l)
            if c.cls != "none":
                need_extra = 0
                dist = 0
                for p in reversed(out):
                    if p.cls == "none": continue
                    if dist >= WINDOW: break
                    g = required_gap(p, c)
                    if g > dist: need_extra = max(need_extra, g - dist)
                    dist += p.nopn
                if need_extra:
                    ninserted += need_extra
                    n = need_extra
                    while n > 0:
                        k = min(n, 16)
                        out.append(Ins(f"s_nop {k-1}"))
                        n -= k
            out.append(c)
        if verbose: print("inserted wait states:", ninserted)
        return "\n".join(("" if (i.is_label or i.text.startswith(".")) else "    ") + i.text for i in out) + "\n"
    def flush(self):
        self("s_nop 11")

def kernel_desc(name, vgpr, sgpr=102):
    acc = (vgpr + 3) // 4 * 4
    return f""".p2align 6
.amdhsa_kernel {name}
  .amdhsa_next_free_vgpr {vgpr}
  .amdhsa_next_free_sgpr {sgpr}
  .amdhsa_accum_offset {acc}
  .amdhsa_group_segment_fixed_size 0
  .amdhsa_kernarg_size 128
  .amdhsa_user_sgpr_count 2
  .amdhsa_user_sgpr_kernarg_segment_ptr 1
  .amdhsa_system_sgpr_workgroup_id_x 1
.end_amdhsa_kernel
"""
def vr(a, n=1):
    return f"v{a}" if n == 1 else f"v[{a}:{a+n-1}]"
def sr(a, n=1):
    return f"s{a}" if n == 1 else f"s[{a}:{a+n-1}]"
```

```python
from gen_common import *
WS_ST = 0x1200000
def stamp(which, kidx):
    L = []
    if which == 0:
        L += ["s_memrealtime s[86:87]", "s_load_dwordx2 s[88:89], s[0:1], 120",
              "v_lshrrev_b32 v254, 6, v0", "s_nop 0", "v_readfirstlane_b32 s85, v254", "s_nop 3",
              "s_lshl_b32 s85, s85, 3", "s_lshl_b32 s84, s2, 6", "s_add_u32 s84, s84, s85",
              f"s_add_u32 s84, s84, {WS_ST + kidx*32768}",
              "s_waitcnt lgkmcnt(0)",
              "s_mov_b32 s96, s88", "s_and_b32 s97, s89, 0xffff", f"s_mov_b32 s98, {WS_ST + 4*32768}", "s_mov_b32 s99, 0x20000",
              "v_mov_b32 v254, s86", "v_mov_b32 v255, 0", "s_mov_b64 exec, 1",
              "buffer_store_dword v254, v255, s[96:99], s84 offen", "s_mov_b64 exec, -1", "s_waitcnt vmcnt(0)"]
    else:
        L += ["s_waitcnt vmcnt(0) lgkmcnt(0)", "s_memrealtime s[86:87]", "s_waitcnt lgkmcnt(0)",
              "s_mov_b64 exec, 1", "v_mov_b32 v254, s86", "v_mov_b32 v255, 0",
              "buffer_store_dword v254, v255, s[96:99], s84 offen offset:4", "s_endpgm"]
    return L
def instrument(lines, names):
    out = []; k = -1
    for l in lines:
        if l.endswith(":") and l[:-1] in names:
            k = names.index(l[:-1]); out.append(l); out += stamp(0, k)
        elif l == "s_endpgm":
            out += stamp(1, k)
        else: out.append(l)
    return out
def gen_reduce(a, cats, nk):
    kernel_head(a, "diag_kernel")
    le = a.label("Lx")
    a("s_cmp_ge_u32 s2, 1"); a(f"s_cbranch_scc1 {le}")
    a("s_load_dwordx4 s[4:7], s[0:1], 112")
    a("s_waitcnt lgkmcnt(0)")
    a(f"s_sub_u32 s4, s4, {512*nk}"); a("s_subb_u32 s5, s5, 0")
    srd(a, 8, 4, 256); srd(a, 12, 6, WS_ST + 4*32768)
    for ci, (k, w0, w1, nw) in enumerate(cats):
        a("v_mov_b32 v2, -1\nv_mov_b32 v3, 0")
        n = (w1 - w0) * 8
        for base in range(0, n, 64):
            a(f"v_add_u32 v4, {base}, v0")
            a("v_and_b32 v5, 7, v4")
            a(f"v_cmp_gt_u32 vcc, {nw}, v5")
            a("v_lshlrev_b32 v4, 3, v4")
            a(f"s_mov_b32 s20, {WS_ST + k*32768 + w0*64}")
            a("buffer_load_dwordx2 v[6:7], v4, s[12:15], s20 offen")
            a("s_waitcnt vmcnt(0)")
            a("v_cndmask_b32 v6, -1, v6, vcc")
            a("v_cndmask_b32 v7, 0, v7, vcc")
            a("v_min_u32 v2, v2, v6\nv_max_u32 v3, v3, v7")
        a("v_not_b32 v2, v2")
        a(f"v_mov_b32 v8, {ci*8}")
        a("buffer_atomic_umax v2, v8, s[8:11], 0 offen")
        a("buffer_atomic_umax v3, v8, s[8:11], 0 offen offset:4")
        a("s_waitcnt vmcnt(0)")
    a(f"{le}:"); a("s_endpgm")
    return ("diag_kernel", 1, 64, 0, 16)
```

```python
from asmlib import *
NAME = "gated_mix__mha_block__ssm_conv_s4__prompt"
KA = dict(x=0, wqkv=8, wo=16, u=24, A_re=32, A_im=40, B_re=48, B_im=56, C_re=64, C_im=72, log_dt=80, Dskip=88,
          gate_w=96, out=104, dbg=112, ws=120)
WS_QF = 0x000000
WS_KV = 0x200000
WS_XT = 0x600000
WS_KT = 0x800000
KT_VER = 4224
KT_ROW = 2 * KT_VER
WS_G  = 0xC00000
WS_OF = 0xD00000
WS_YT = 0xF00000
WS_SIZE = 0x1100000
LOG2E = 1.4426950408889634
import struct
def f2u(f): return struct.unpack("<I", struct.pack("<f", f))[0]
def fhex(f): return f"0x{f2u(f):08x}"

class VM:
    def __init__(self, a): self.a = a; self.q = []
    def issue(self, text, tag):
        self.a(text); self.q.append(tag)
    def wait(self, *tags):
        idx = max([i for i, t in enumerate(self.q) if t in tags], default=-1)
        if idx < 0: return
        n = len(self.q) - 1 - idx
        assert n <= 63
        self.a(f"s_waitcnt vmcnt({n})")
        self.q = self.q[idx + 1:]
    def wait_all(self):
        self.a("s_waitcnt vmcnt(0)"); self.q = []

class LG:
    def __init__(self, a): self.a = a; self.q = []
    def issue(self, text, tag):
        self.a(text); self.q.append(tag)
    def wait(self, *tags):
        idx = max([i for i, t in enumerate(self.q) if t in tags], default=-1)
        if idx < 0: return
        n = len(self.q) - 1 - idx
        n = min(n, 15)
        self.a(f"s_waitcnt lgkmcnt({n})")
        self.q = self.q[len(self.q) - n:] if n else []
    def wait_all(self):
        self.a("s_waitcnt lgkmcnt(0)"); self.q = []

def srd(a, d, base, nbytes):
    a(f"s_mov_b32 s{d}, s{base}")
    a(f"s_and_b32 s{d+1}, s{base+1}, 0xffff")
    a(f"s_mov_b32 s{d+2}, {nbytes}")
    a(f"s_mov_b32 s{d+3}, 0x20000")

def kernel_head(a, name):
    a(f".globl {name}\n.p2align 8\n.type {name},@function\n{name}:")
```

```python
from gen_common import *

K1_LDS = 81920
N_GEMM, N_GATE, N_KGEN = 224, 32, 224

def gen_gemm(a):
    vm = VM(a); lg = LG(a)
    S_X, S_W, S_WS = 8, 12, 16
    s_w, s_g, s_tb, s_b2, s_t0off = 20, 21, 22, 23, 24
    s_xo = 32
    s_wo = 40
    s_tmp, s_tmp2, s_m0x, s_m0w, s_scale, s_hs, s_qkbase, s_kvt = 48, 49, 50, 51, 52, 53, 54, 55
    XBASE = 49152
    accT = [16, 32]; accN = 48; accX = 64
    xf = [80, 96]
    wf = 112
    idf = 160
    vx = 168
    vw = 172
    aX = 176
    aT = 180
    aN = 182
    vst = 184
    vstV, vstX, vstP = 192, 193, 194
    l, t1, t2, t3, t4, t5 = 1, 2, 3, 4, 5, 6
    a("s_load_dwordx4 s[4:7], s[0:1], 0")
    a("s_load_dwordx2 s[28:29], s[0:1], 120")
    a(f"v_and_b32 v{l}, 63, v0")
    a(f"v_lshrrev_b32 v{t1}, 6, v0")
    a(f"v_readfirstlane_b32 s{s_w}, v{t1}")
    a(f"s_and_b32 s{s_tmp}, s2, 7")
    a(f"s_lshr_b32 s{s_tmp2}, s2, 3")
    a(f"s_and_b32 s{s_tb}, s{s_tmp}, 3")
    a(f"s_lshl_b32 s{s_tb}, s{s_tb}, 2")
    a(f"s_and_b32 s{s_g}, s{s_tmp2}, 3")
    a(f"s_add_u32 s{s_tb}, s{s_tb}, s{s_g}")
    a(f"s_lshr_b32 s{s_tmp}, s{s_tmp}, 2")
    a(f"s_mul_i32 s{s_tmp}, s{s_tmp}, 7")
    a(f"s_lshr_b32 s{s_g}, s{s_tmp2}, 2")
    a(f"s_add_u32 s{s_g}, s{s_g}, s{s_tmp}")
    a(f"s_and_b32 s{s_b2}, s{s_g}, 1")
    a(f"s_lshl_b32 s{s_b2}, s{s_b2}, 1")
    a(f"s_lshl_b32 s{s_tb}, s{s_tb}, 2")
    a(f"s_add_u32 s{s_tb}, s{s_tb}, s{s_w}")
    a(f"s_mul_i32 s{s_t0off}, s{s_tb}, {32*896}")
    a(f"s_lshr_b32 s{s_tmp}, s{s_g}, 1")
    for p in range(7):
        a(f"s_lshl_b32 s{s_tmp2}, s{s_tmp}, 7")
        a(f"s_add_u32 s{s_xo+p}, s{s_tmp2}, s{s_t0off}")
        a(f"s_mul_i32 s{s_wo+p}, s{s_tmp}, {64*2688}")
        if p < 6:
            a(f"s_add_u32 s{s_tmp}, s{s_tmp}, 1")
            a(f"s_cmp_eq_u32 s{s_tmp}, 7")
            a(f"s_cselect_b32 s{s_tmp}, 0, s{s_tmp}")
    a(f"s_lshl_b32 s{s_m0x}, s{s_w}, 12")
    a(f"s_add_u32 s{s_m0x}, s{s_m0x}, {XBASE}")
    a(f"s_mul_i32 s{s_m0w}, s{s_w}, 3072")
    a(f"v_lshrrev_b32 v{t1}, 3, v{l}")
    a(f"v_mul_u32_u24 v{t2}, 896, v{t1}")
    a(f"v_and_b32 v{t3}, 7, v{l}")
    a(f"v_lshrrev_b32 v{t4}, 4, v{l}")
    a(f"v_xor_b32 v{t5}, v{t3}, v{t4}")
    a(f"v_lshl_add_u32 v{vx}, v{t5}, 4, v{t2}")
    a(f"v_xor_b32 v{t5}, 4, v{t5}")
    a(f"v_lshl_add_u32 v{vx+1}, v{t5}, 4, v{t2}")
    a(f"v_add_u32 v{vx+1}, 6144, v{vx+1}")
    a(f"v_add_u32 v{vx+2}, 12288, v{vx}")
    a(f"v_add_u32 v{vx+3}, 12288, v{vx+1}")
    a(f"s_xor_b32 s{s_tmp}, s{s_w}, s{s_b2}")
    a(f"s_mul_i32 s{s_tmp}, s{s_tmp}, {16*2688}")
    a(f"s_lshl_b32 s{s_tmp2}, s{s_g}, 7")
    a(f"s_add_u32 s{s_tmp2}, s{s_tmp2}, s{s_tmp}")
    a(f"v_mul_u32_u24 v{t2}, 2688, v{t1}")
    a(f"v_and_b32 v{t5}, 1, v{t4}")
    a(f"v_lshlrev_b32 v{t5}, 2, v{t5}")
    a(f"v_xor_b32 v{t5}, v{t3}, v{t5}")
    a(f"v_lshl_add_u32 v{vw}, v{t5}, 4, v{t2}")
    a(f"v_add_u32 v{vw}, s{s_tmp2}, v{vw}")
    a(f"v_add_u32 v{vw+2}, {8*2688-2048}, v{vw}")
    a(f"s_lshl_b32 s{s_tmp2}, s{s_g}, 6")
    a(f"s_add_u32 s{s_tmp2}, s{s_tmp2}, s{s_tmp}")
    a(f"s_add_u32 s{s_tmp2}, s{s_tmp2}, {1792-1024}")
    a(f"v_lshrrev_b32 v{t2}, 2, v{l}")
    a(f"v_mul_u32_u24 v{t2}, 2688, v{t2}")
    a(f"v_and_b32 v{t5}, 3, v{l}")
    a(f"v_lshl_add_u32 v{vw+1}, v{t5}, 4, v{t2}")
    a(f"v_add_u32 v{vw+1}, s{s_tmp2}, v{vw+1}")
    a("s_waitcnt lgkmcnt(0)")
    srd(a, S_X, 4, 2048*896)
    srd(a, S_W, 6, 448*2688)
    srd(a, S_WS, 28, WS_SIZE)

    def dma_x(p):
        a(f"s_add_u32 m0, s{s_m0x}, {(p % 2) * 16384}")
        for i in range(4):
            vm.issue(f"buffer_load_dwordx4 v{vx+i}, s[{S_X}:{S_X+3}], s{s_xo+p} offen offset:{1024*i} lds", ("x", p))
    def dma_w(p):
        a(f"s_add_u32 m0, s{s_m0w}, {(p % 4) * 12288}")
        for i in range(3):
            vm.issue(f"buffer_load_dwordx4 v{vw+i}, s[{S_W}:{S_W+3}], s{s_wo+p} offen offset:{1024*i} lds", ("w", p))
    dma_x(0); dma_w(0); dma_x(1); dma_w(1); dma_w(2); dma_w(3)

    row, h = 7, 8
    a(f"v_and_b32 v{row}, 31, v{l}")
    a(f"v_lshrrev_b32 v{h}, 5, v{l}")
    a(f"v_bfe_u32 v{t1}, v{row}, 1, 3")
    a(f"v_lshlrev_b32 v{t2}, 7, v{row}")
    a(f"v_add_u32 v{t2}, s{s_m0x}, v{t2}")
    a(f"s_lshl_b32 s{s_tmp}, s{s_b2}, 1")
    a(f"v_xor_b32 v{t1}, v{t1}, v{h}")
    a(f"v_xor_b32 v{t1}, s{s_tmp}, v{t1}")
    for s in range(4):
        a(f"v_xor_b32 v{t3}, {2*s}, v{t1}")
        a(f"v_lshl_add_u32 v{aX+s}, v{t3}, 4, v{t2}")
    a(f"v_bfe_u32 v{t1}, v{l}, 2, 2")
    a(f"v_bfe_u32 v{t2}, v{l}, 4, 1")
    a(f"v_and_b32 v{t3}, 3, v{l}")
    a(f"v_lshlrev_b32 v{t3}, 3, v{t3}")
    a(f"v_lshl_add_u32 v{t3}, v{t2}, 5, v{t3}")
    a(f"v_lshl_add_u32 v{t4}, v{t1}, 7, v{t3}")
    a(f"v_lshl_add_u32 v{t4}, v{h}, 11, v{t4}")
    a(f"v_lshrrev_b32 v{t5}, 1, v{t1}")
    a(f"v_lshl_add_u32 v{aT}, v{t5}, 6, v{t4}")
    a(f"v_xor_b32 v{aT+1}, 64, v{aT}")
    a(f"v_lshl_add_u32 v{t4}, v{t1}, 6, v{t3}")
    a(f"v_lshl_add_u32 v{t4}, v{h}, 9, v{t4}")
    a(f"v_add_u32 v{aN}, 1024, v{t4}")
    a(f"v_and_b32 v{t1}, 1, v{row}")
    a(f"v_lshlrev_b32 v{t1}, 4, v{t1}")
    a(f"v_mov_b32 v{t2}, 0x3f80")
    a(f"v_lshlrev_b32 v{t1}, v{t1}, v{t2}")
    a(f"v_lshrrev_b32 v{t2}, 1, v{row}")
    a(f"v_lshlrev_b32 v{t3}, 2, v{h}")
    a(f"v_sub_u32 v{t2}, v{t2}, v{t3}")
    for q in range(8):
        k = (q & 3) + 8 * (q >> 2)
        a(f"v_cmp_eq_u32 vcc, {k}, v{t2}")
        a(f"v_cndmask_b32 v{idf+q}, 0, v{t1}, vcc")
    a(f"s_cmp_lt_u32 s{s_g}, 7")
    a(f"s_cselect_b32 s{s_scale}, {fhex(28**-0.5*LOG2E)}, 1.0")
    a(f"s_cselect_b32 s{s_hs}, 17, 18")
    a(f"s_cselect_b32 s{s_tmp}, 11, 12")
    a(f"s_cselect_b32 s{s_qkbase}, {WS_QF}, {WS_KV}")
    a(f"s_cselect_b32 s{s_tmp2}, 0, 7")
    a(f"s_lshl_b32 s{s_tmp}, s{s_tb}, s{s_tmp}")
    a(f"s_add_u32 s{s_qkbase}, s{s_qkbase}, s{s_tmp}")
    a(f"s_lshl_b32 s{s_kvt}, s{s_tb}, 12")
    a(f"s_add_u32 s{s_kvt}, s{s_kvt}, {WS_KV}")
    a(f"s_sub_u32 s{s_tmp2}, s{s_g}, s{s_tmp2}")
    a(f"s_lshl_b32 s{s_tmp2}, s{s_tmp2}, 4")
    a(f"v_add_u32 v{t1}, s{s_tmp2}, v{h}")
    a(f"v_lshlrev_b32 v{t5}, 4, v{row}")
    for u in range(8):
        a(f"v_add_u32 v{t2}, {2*u}, v{t1}")
        a(f"v_mul_u32_u24 v{t3}, 147, v{t2}")
        a(f"v_lshrrev_b32 v{t3}, 10, v{t3}")
        a(f"v_mul_u32_u24 v{t4}, 7, v{t3}")
        a(f"v_sub_u32 v{t2}, v{t2}, v{t4}")
        a(f"v_lshlrev_b32 v{t3}, s{s_hs}, v{t3}")
        a(f"v_add_u32 v{t3}, v{t3}, v{t5}")
        a(f"v_lshrrev_b32 v{t4}, 1, v{t2}")
        a(f"v_lshl_add_u32 v{t3}, v{t4}, 9, v{t3}")
        a(f"v_and_b32 v{t4}, 1, v{t2}")
        a(f"v_lshl_add_u32 v{vst+u}, v{t4}, 3, v{t3}")
    a(f"s_lshl_b32 s{s_tmp}, s{s_g}, 5")
    a(f"v_add_u32 v{t1}, s{s_tmp}, v{row}")
    a(f"v_mul_u32_u24 v{t2}, 2341, v{t1}")
    a(f"v_lshrrev_b32 v{t2}, 16, v{t2}")
    a(f"v_mul_u32_u24 v{t3}, 28, v{t2}")
    a(f"v_sub_u32 v{t3}, v{t1}, v{t3}")
    a(f"v_lshlrev_b32 v{t2}, 18, v{t2}")
    a(f"v_lshl_add_u32 v{t2}, v{t3}, 4, v{t2}")
    a(f"v_lshl_add_u32 v{vstV}, v{h}, 9, v{t2}")
    a(f"v_lshlrev_b32 v{t2}, 12, v{t1}")
    a(f"v_lshl_add_u32 v{vstX}, v{h}, 4, v{t2}")
    a(f"s_lshl_b32 s{s_tmp}, s{s_g}, 19")
    a(f"v_lshl_add_u32 v{t2}, v{h}, 18, v{t5}")
    a(f"v_add_u32 v{vstP}, s{s_tmp}, v{t2}")

    first = {accT[0]: True, accT[1]: True, accN: True, accX: True}
    def mfma(acc, A, B):
        c = "0" if first[acc] else vr(acc, 16)
        first[acc] = False
        a(f"v_mfma_f32_32x32x16_bf16 {vr(acc,16)}, {vr(A,4)}, {vr(B,4)}, {c}")
    for p in range(7):
        vm.wait(("x", p), ("w", p))
        a("s_barrier")
        xb = xf[p % 2]
        for s in range(4):
            lg.issue(f"ds_read_b128 {vr(xb+4*s,4)}, v{aX+s} offset:{(p%2)*16384}", ("x", p, s))
        def rdw(s):
            base = (p % 4) * 12288 + s * 3072
            r = wf + 12 * s
            lg.issue(f"ds_read_b64_tr_b16 {vr(r,2)}, v{aT} offset:{base}", ("w", s, 0))
            lg.issue(f"ds_read_b64_tr_b16 {vr(r+2,2)}, v{aT} offset:{base+512}", ("w", s, 0))
            lg.issue(f"ds_read_b64_tr_b16 {vr(r+4,2)}, v{aT+1} offset:{base}", ("w", s, 1))
            lg.issue(f"ds_read_b64_tr_b16 {vr(r+6,2)}, v{aT+1} offset:{base+512}", ("w", s, 1))
            lg.issue(f"ds_read_b64_tr_b16 {vr(r+8,2)}, v{aN} offset:{base}", ("w", s, 2))
            lg.issue(f"ds_read_b64_tr_b16 {vr(r+10,2)}, v{aN} offset:{base+256}", ("w", s, 2))
        rdw(0)
        if p + 3 < 7 and p >= 1: dma_w(p + 3)
        lg.wait(("x", p, 3))
        if p + 2 < 7: dma_x(p + 2)
        rdw(1)
        for s in range(4):
            r = wf + 12 * s
            lg.wait(("w", s, 0))
            mfma(accT[0], r, xb + 4*s)
            if s + 2 < 4: rdw(s + 2)
            lg.wait(("w", s, 1))
            mfma(accT[1], r + 4, xb + 4*s)
            lg.wait(("w", s, 2))
            mfma(accN, xb + 4*s, r + 8)
            if p == 0 and s < 2:
                mfma(accX, xb + 4*s, idf + 4*s)
        if p == 0:
            pk = 196
            for q in range(8):
                a(f"v_cvt_pk_bf16_f32 v{pk+q}, v{accX+2*q}, v{accX+2*q+1}")
            for j in range(2):
                a(f"v_permlane32_swap_b32 v{pk+4*j}, v{pk+4*j+2}")
                a(f"v_permlane32_swap_b32 v{pk+4*j+1}, v{pk+4*j+3}")
            a(f"s_lshl_b32 s{s_tmp}, s{s_tb}, 6")
            a(f"s_add_u32 s{s_tmp}, s{s_tmp}, {WS_XT}")
            for j in range(2):
                vm.issue(f"buffer_store_dwordx4 {vr(pk+4*j,4)}, v{vstX}, s[{S_WS}:{S_WS+3}], s{s_tmp} offen offset:{32*j}", "st")
    pk = 80
    for q in range(8):
        a(f"v_cvt_pk_bf16_f32 v{pk+q}, v{accN+2*q}, v{accN+2*q+1}")
    for kk in range(2):
        a(f"buffer_store_dwordx4 {vr(pk+4*kk,4)}, v{vstV}, s[{S_WS}:{S_WS+3}], s{s_kvt} offen offset:{2048+1024*kk}")
    pk = 96
    for tt in range(2):
        for r in range(16):
            a(f"v_mul_f32 v{accT[tt]+r}, s{s_scale}, v{accT[tt]+r}")
        for q in range(8):
            a(f"v_cvt_pk_bf16_f32 v{pk+8*tt+q}, v{accT[tt]+2*q}, v{accT[tt]+2*q+1}")
        for i in range(4):
            a(f"buffer_store_dwordx2 {vr(pk+8*tt+2*i,2)}, v{vst+4*tt+i}, s[{S_WS}:{S_WS+3}], s{s_qkbase} offen")
    lab = a.label("Lnopad"); lab2 = a.label("Lvpad")
    a(f"s_cmp_lt_u32 s{s_g}, 8")
    a(f"s_cbranch_scc0 {lab2}")
    a(f"v_mov_b32 v4, 0\nv_mov_b32 v5, 0")
    a(f"buffer_store_dwordx2 v[4:5], v{vstP}, s[{S_WS}:{S_WS+3}], s{s_kvt} offen offset:{1024+512+8}")
    a("s_endpgm")
    a(f"{lab2}:")
    a(f"s_cmp_lt_u32 s{s_g}, 12")
    a(f"s_cbranch_scc0 {lab}")
    a(f"s_sub_u32 s{s_tmp}, s{s_g}, 8")
    a(f"s_lshl_b32 s{s_tmp}, s{s_tmp}, 20")
    a(f"v_lshrrev_b32 v2, 4, v{l}")
    a(f"v_lshlrev_b32 v2, 18, v2")
    a(f"v_bfe_u32 v3, v{l}, 2, 2")
    a(f"v_lshl_add_u32 v2, v3, 9, v2")
    a(f"v_and_b32 v3, 3, v{l}")
    a(f"v_lshl_add_u32 v2, v3, 4, v2")
    a(f"v_add_u32 v2, s{s_tmp}, v2")
    a(f"v_cmp_eq_u32 vcc, 0, v3")
    a(f"v_mov_b32 v3, 0x3f803f80")
    for e in range(4): a(f"v_cndmask_b32 v{8+e}, 0, v3, vcc")
    a(f"buffer_store_dwordx4 v[8:11], v2, s[{S_WS}:{S_WS+3}], s{s_kvt} offen offset:{2048+28*16}")
    a(f"{lab}:")
    a("s_endpgm")

def gen_gate(a):
    S_X, S_GW, S_WS = 8, 12, 16
    a("s_load_dwordx2 s[4:5], s[0:1], 0")
    a(f"s_load_dwordx2 s[6:7], s[0:1], {KA['gate_w']}")
    a("s_load_dwordx2 s[28:29], s[0:1], 120")
    a(f"s_sub_u32 s20, s2, {N_GEMM}")
    a(f"s_mul_i32 s21, s20, {64*896}")
    a("v_lshrrev_b32 v1, 2, v0")
    a("v_and_b32 v2, 3, v0")
    a("v_lshlrev_b32 v2, 4, v2")
    a("v_mul_u32_u24 v3, 896, v1")
    a("v_add_u32 v3, v3, v2")
    a("s_waitcnt lgkmcnt(0)")
    srd(a, S_X, 4, 2048*896)
    srd(a, S_GW, 6, 896)
    srd(a, S_WS, 28, WS_SIZE)
    for i in range(14):
        a(f"buffer_load_dwordx4 {vr(16+8*i,4)}, v3, s[{S_X}:{S_X+3}], s21 offen offset:{64*i}")
        a(f"buffer_load_dwordx4 {vr(20+8*i,4)}, v2, s[{S_GW}:{S_GW+3}], 0 offen offset:{64*i}")
    for j in range(4): a(f"v_mov_b32 v{8+j}, 0")
    for i in range(14):
        a(f"s_waitcnt vmcnt({26-2*i})")
        for j in range(4):
            a(f"v_dot2_f32_bf16 v{8+j}, v{16+8*i+j}, v{20+8*i+j}, v{8+j}")
    a("s_nop 3")
    a("v_add_f32 v8, v8, v9\nv_add_f32 v10, v10, v11\nv_add_f32 v8, v8, v10")
    a("v_add_f32_dpp v8, v8, v8 quad_perm:[1,0,3,2] row_mask:0xf bank_mask:0xf")
    a("v_add_f32_dpp v8, v8, v8 quad_perm:[2,3,0,1] row_mask:0xf bank_mask:0xf")
    a(f"v_mul_f32 v8, {fhex(-LOG2E)}, v8")
    a("v_exp_f32 v8, v8")
    a("v_add_f32 v8, 1.0, v8")
    a("v_rcp_f32 v8, v8")
    a("s_lshl_b32 s21, s20, 8")
    a(f"s_add_u32 s21, s21, {WS_G}")
    a("v_lshlrev_b32 v1, 2, v1")
    a(f"buffer_store_dword v8, v1, s[{S_WS}:{S_WS+3}], s21 offen")
    a("s_endpgm")

def gen_kgen(a):
    lg = LG(a)
    S_WS = 16
    SR = [32, 36, 40, 44, 48, 52]
    s_w, s_kg, s_d, s_mh, s_ldt, s_dsk, s_tmp, s_lds, s_off = 20, 21, 22, 23, 24, 25, 26, 27, 30
    RS = 272
    l = 1
    a("s_load_dwordx16 s[64:79], s[0:1], 32")
    a("s_load_dwordx2 s[28:29], s[0:1], 120")
    a(f"s_sub_u32 s{s_kg}, s2, {N_GEMM+N_GATE}")
    a(f"v_and_b32 v{l}, 63, v0")
    a("v_lshrrev_b32 v2, 6, v0")
    a(f"v_readfirstlane_b32 s{s_w}, v2")
    a(f"s_lshr_b32 s{s_d}, s{s_w}, 1")
    a(f"s_and_b32 s{s_mh}, s{s_w}, 1")
    a(f"s_lshl_b32 s{s_tmp}, s{s_kg}, 2")
    a("s_waitcnt lgkmcnt(0)")
    a(f"s_load_dword s{s_ldt}, s[76:77], s{s_tmp}")
    a(f"s_load_dword s{s_dsk}, s[78:79], s{s_tmp}")
    for i in range(6): srd(a, SR[i], 64 + 2*i, 448*512)
    srd(a, S_WS, 28, WS_SIZE)
    a(f"s_lshl_b32 s{s_off}, s{s_kg}, 10")
    a("v_lshlrev_b32 v2, 2, v0")
    raw = 8
    for i in range(6):
        a(f"buffer_load_dword v{raw+i}, v2, s[{SR[i]}:{SR[i]+3}], s{s_off} offen")
    a(f"s_mul_i32 s{s_lds}, s{s_w}, {64*RS}")
    awr, ardZ, ardE = 14, 15, 16
    a(f"v_lshlrev_b32 v{awr}, 2, v{l}")
    a(f"v_add_u32 v{awr}, s{s_lds}, v{awr}")
    a(f"v_and_b32 v2, 31, v{l}")
    a(f"v_mul_u32_u24 v3, {RS}, v2")
    a(f"v_lshrrev_b32 v4, 5, v{l}")
    a(f"v_lshl_add_u32 v3, v4, 4, v3")
    a(f"v_add_u32 v{ardZ}, s{s_lds}, v3")
    a("s_waitcnt lgkmcnt(0)")
    a(f"s_lshl_b32 s{s_tmp}, s{s_d}, 4")
    a(f"s_lshr_b32 s{s_ldt}, s{s_ldt}, s{s_tmp}")
    a(f"s_lshl_b32 s{s_ldt}, s{s_ldt}, 16")
    a(f"s_lshr_b32 s{s_dsk}, s{s_dsk}, s{s_tmp}")
    a(f"s_lshl_b32 s{s_dsk}, s{s_dsk}, 16")
    a(f"s_lshl_b32 s{s_tmp}, s{s_kg}, 1")
    a(f"s_add_u32 s{s_d}, s{s_d}, s{s_tmp}")
    dt = 17
    import numpy as np
    L2E_hi = float(np.float32(LOG2E)); L2E_lo = LOG2E - L2E_hi
    a(f"v_mov_b32 v2, s{s_ldt}")
    a(f"v_mov_b32 v5, {fhex(L2E_hi)}")
    a("v_mul_f32 v3, v2, v5")
    a("v_fma_f32 v4, v2, v5, -v3")
    a(f"v_fmac_f32 v4, {fhex(L2E_lo)}, v2")
    a("v_exp_f32 v3, v3")
    a(f"v_mul_f32 v4, {fhex(0.6931471805599453)}, v4")
    a("v_fmac_f32 v3, v3, v4")
    a(f"v_cvt_pk_bf16_f32 v{dt}, v3, v3")
    a(f"v_lshlrev_b32 v{dt}, 16, v{dt}")
    acc = 32
    w1, w8, w256, cb = 48, 50, 52, 54
    fr = 64
    def zrow(r, h): return (r & 3) + 8 * (r >> 2) + 4 * h
    tmpi = [0]
    def cmul(dst, src, w):
        t = 56 + 2 * (tmpi[0] % 4); tmpi[0] += 1
        return [f"v_pk_mul_f32 {vr(t,2)}, {vr(src,2)}, {vr(w,2)} op_sel:[0,0] op_sel_hi:[1,0]",
                f"v_pk_fma_f32 {vr(dst,2)}, {vr(src,2)}, {vr(w,2)}, {vr(t,2)} op_sel:[1,1,0] op_sel_hi:[0,1,1] neg_lo:[1,0,0]"]
    pki = [0]
    def emit_row(src, row, neg):
        p = 128 + pki[0] % 8; pki[0] += 1
        a(f"v_cvt_pk_bf16_f32 v{p}, v{src}, {'-' if neg else ''}v{src+1}")
        lg.issue(f"ds_write_b32 v{awr}, v{p} offset:{row*RS}", "w")
    a("s_waitcnt vmcnt(0)")
    for ps in range(2):
        val = 18
        for i in range(6):
            if ps == 0: a(f"v_lshlrev_b32 v{val+i}, 16, v{raw+i}")
            else: a(f"v_and_b32 v{val+i}, 0xffff0000, v{raw+i}")
        for i in range(4): a(f"v_mul_f32 v{val+i}, v{dt}, v{val+i}")
        a(f"v_mul_f32 v{val}, {fhex(LOG2E)}, v{val}")
        a(f"v_mul_f32 v{val+1}, {fhex(0.15915494309189535)}, v{val+1}")
        for (wr, m) in ((w1, 1.0), (w8, 8.0), (w256, 256.0)):
            if m == 1.0:
                a(f"v_exp_f32 v2, v{val}")
                a(f"v_fract_f32 v3, v{val+1}")
            else:
                a(f"v_mul_f32 v2, {fhex(m)}, v{val}")
                a(f"v_mul_f32 v3, {fhex(m)}, v{val+1}")
                a("v_exp_f32 v2, v2")
                a("v_fract_f32 v3, v3")
            a("v_cos_f32 v4, v3")
            a("v_sin_f32 v5, v3")
            a(f"v_mul_f32 v{wr}, v2, v4")
            a(f"v_mul_f32 v{wr+1}, v2, v5")
        for i in cmul(cb, val + 2, val + 4): a(i)
        E = 136
        ea, eb, e2 = 136, 138, 140
        Zb = 144
        z = lambda i: cb if i == 0 else Zb + 2 * i
        ops_e = []
        ops_z = []
        a(f"v_mov_b32 v{ea}, 1.0\nv_mov_b32 v{ea+1}, 0")
        ops_e.append(([], (ea, 32, False)))
        ops_e.append(([], (w8, 33, False)))
        ops_e.append((("cm", e2, w8, w8), (e2, 34, False)))
        ops_e.append((("cm", eb, e2, w8), (eb, 35, False)))
        ops_e.append((("cm", ea, e2, e2), (ea, 36, False)))
        for k in range(5, 32):
            r = eb if k % 2 else ea
            ops_e.append((("cm", r, r, e2), (r, 32 + k, False)))
        ops_z.append(([], (cb, zrow(0, 0), True)))
        for i in range(1, 8):
            ops_z.append((("cm", z(i), z(i-1), w1), (z(i), zrow(i, 0), True)))
        ops_z.append((("cm", z(8), z(0), w8), (z(8), zrow(8, 0), True)))
        y0 = 162
        ops_z.append((("cm", y0, z(0), w256), (y0, zrow(9, 0), True)))
        for j, i in enumerate((2, 4, 6, 8)):
            ops_z.append((("cm", z(i), z(i), w256), (z(i), zrow(10 + j, 0), True)))
        for rep in range(2):
            for j, r in enumerate((y0, z(4), z(8))):
                ops_z.append((("cm", r, r, w256), (r, zrow(3*rep + j, 1), True)))
        for rep in range(4):
            for j, r in enumerate((y0, z(8))):
                ops_z.append((("cm", r, r, w256), (r, zrow(6 + 2*rep + j, 1), True)))
        n = max(len(ops_e), len(ops_z))
        for i in range(n):
            cur = [o[i] for o in (ops_e, ops_z) if i < len(o)]
            ins = [cmul(*c[0][1:]) if c[0] else [] for c in cur]
            for k in range(2):
                for x in ins:
                    if x: a(x[k])
            for c in cur: emit_row(*c[1])
        for s in range(8):
            lg.issue(f"ds_read_b128 {vr(fr+8*s,4)}, v{ardZ} offset:{32*s}", ("f", s))
            lg.issue(f"ds_read_b128 {vr(fr+8*s+4,4)}, v{ardZ} offset:{32*RS+32*s}", ("f", s))
        for s in range(8):
            lg.wait(("f", s))
            c = "0" if (ps == 0 and s == 0) else vr(acc, 16)
            a(f"v_mfma_f32_32x32x16_bf16 {vr(acc,16)}, {vr(fr+8*s,4)}, {vr(fr+8*s+4,4)}, {c}")
    a(f"v_lshlrev_b32 v2, 4, v{l}")
    a(f"v_add_u32 v3, s{s_lds}, v2")
    a(f"s_xor_b32 s{s_tmp}, s{s_w}, 1")
    a(f"s_mul_i32 s{s_tmp}, s{s_tmp}, {64*RS}")
    a(f"v_add_u32 v4, s{s_tmp}, v2")
    for i in range(4):
        a(f"ds_write_b128 v3, {vr(acc+4*i,4)} offset:{1024*i}")
    a("s_waitcnt lgkmcnt(0)")
    a("s_barrier")
    for i in range(4):
        a(f"ds_read_b128 {vr(fr+4*i,4)}, v4 offset:{1024*i}")
    a(f"v_and_b32 v2, 31, v{l}")
    a("v_sub_u32 v5, 31, v2")
    a("v_lshlrev_b32 v5, 4, v5")
    a(f"s_mul_i32 s{s_off}, s{s_d}, {KT_ROW}")
    a(f"s_mul_i32 s{s_tmp}, s{s_mh}, {KT_VER}")
    a(f"s_add_u32 s{s_off}, s{s_off}, s{s_tmp}")
    a(f"s_add_u32 s{s_off}, s{s_off}, {WS_KT}")
    a("v_and_b32 v2, 1, v2")
    a("v_cmp_eq_u32 s[56:57], 1, v2")
    a("s_waitcnt lgkmcnt(0)")
    for r in range(16):
        a(f"v_add_f32 v{acc+r}, v{acc+r}, v{fr+r}")
    a("s_mov_b64 exec, 1")
    a(f"v_add_f32 v{acc}, s{s_dsk}, v{acc}")
    a("s_mov_b64 exec, -1")
    for i in range(4):
        a(f"v_cndmask_b32 v{80+i}, v{acc+6+2*i}, v{acc+7+2*i}, s[56:57]")
    lv1 = a.label("Lver1"); lend = a.label("Lkend")
    a(f"s_cmp_eq_u32 s{s_mh}, 1")
    a(f"s_cbranch_scc1 {lv1}")
    R = lambda i: f"v{acc+i}"
    groups = []
    groups.append((0, 0, [R(i) for i in range(9)]))
    A_, B_, C_, D_, E_ = [R(9+i) for i in range(5)]
    groups.append((0, 32, [A_, A_, B_, C_, C_, C_, D_, E_, E_]))
    for rep in range(2):
        x, y, zz = [R(3*rep+i) for i in range(3)]
        groups.append((1, 64 + 32*rep, [x, x, x, y, y, y, zz, zz, zz]))
    for i in range(4):
        x, y = R(6+2*i), R(7+2*i)
        groups.append((1, 128 + 32*i, [x, x, x, x, f"v{80+i}", y, y, y, y]))
    for ver in range(2):
        if ver == 1: a(f"{lv1}:")
        cur = None
        for gi, (hf, gb, K) in enumerate(groups):
            if cur != hf:
                a("s_mov_b32 exec_lo, " + ("-1" if hf == 0 else "0"))
                a("s_mov_b32 exec_hi, " + ("0" if hf == 0 else "-1"))
                cur = hf
            d = 88 + 4 * gi
            for e in range(4):
                a(f"v_cvt_pk_bf16_f32 v{d+e}, {K[7+ver-2*e]}, {K[6+ver-2*e]}")
            a(f"buffer_store_dwordx4 {vr(d,4)}, v5, s[{S_WS}:{S_WS+3}], s{s_off} offen offset:{(224-gb)*16}")
        a("s_mov_b64 exec, 0xff")
        for e in range(4): a(f"v_mov_b32 v{120+e}, 0")
        a(f"v_lshlrev_b32 v6, 4, v{l}")
        a("v_add_u32 v6, 4096, v6")
        if ver == 1:
            a("s_mov_b64 exec, 1")
            a(f"v_cvt_pk_bf16_f32 v120, v{acc}, 0")
            a("s_mov_b64 exec, 0xff")
        a(f"buffer_store_dwordx4 v[120:123], v6, s[{S_WS}:{S_WS+3}], s{s_off} offen")
        a("s_endpgm")

def gen_k1(a):
    kernel_head(a, "k1_kernel")
    lg_, lk_, le_ = a.label("Lgate"), a.label("Lkgen"), a.label("Lexit")
    a(f"s_cmp_ge_u32 s2, {N_GEMM+N_GATE+N_KGEN}")
    a(f"s_cbranch_scc1 {le_}")
    a(f"s_cmp_ge_u32 s2, {N_GEMM+N_GATE}")
    a(f"s_cbranch_scc1 {lk_}")
    a(f"s_cmp_ge_u32 s2, {N_GEMM}")
    a(f"s_cbranch_scc1 {lg_}")
    gen_gemm(a)
    a(f"{lg_}:")
    gen_gate(a)
    a(f"{lk_}:")
    gen_kgen(a)
    a(f"{le_}:")
    a("s_endpgm")
    return ("k1_kernel", N_GEMM+N_GATE+N_KGEN, 256, K1_LDS, 208)
```

```python
from gen_common import *

K2_LDS = 65536
N_ATT, N_CONV = 256, 224

def gen_attn(a):
    vm = VM(a)
    S_WS = 8
    s_w, s_hd, s_qb, s_tmp, s_tmp2, s_kv0, s_of = 20, 21, 22, 23, 24, 25, 26
    s_kt = 32
    Q, O, S, P, KV = 16, 48, [112, 128], [144, 152], [160, 176, 192]
    l, l16 = 1, 2
    a("s_load_dwordx2 s[4:5], s[0:1], 120")
    a(f"v_and_b32 v{l}, 63, v0")
    a("v_lshrrev_b32 v3, 6, v0")
    a(f"v_readfirstlane_b32 s{s_w}, v3")
    a(f"v_lshlrev_b32 v{l16}, 4, v{l}")
    a(f"s_and_b32 s{s_hd}, s2, 7")
    a(f"s_lshl_b32 s{s_hd}, s{s_hd}, 1")
    a(f"s_bfe_u32 s{s_tmp}, s2, 0x10003")
    a(f"s_add_u32 s{s_hd}, s{s_hd}, s{s_tmp}")
    a(f"s_lshr_b32 s{s_qb}, s2, 4")
    a(f"s_lshl_b32 s{s_kv0}, s{s_hd}, 18")
    a(f"s_add_u32 s{s_kv0}, s{s_kv0}, {WS_KV}")
    a(f"s_lshl_b32 s{s_tmp}, s{s_w}, 16")
    a(f"s_add_u32 s{s_kt}, s{s_kv0}, s{s_tmp}")
    for i in range(1, 16): a(f"s_add_u32 s{s_kt+i}, s{s_kt}, {4096*i}")
    s_q = 48
    a(f"s_lshl_b32 s{s_tmp}, s{s_hd}, 17")
    a(f"s_lshl_b32 s{s_tmp2}, s{s_qb}, 13")
    a(f"s_add_u32 s{s_tmp}, s{s_tmp}, s{s_tmp2}")
    if WS_QF: a(f"s_add_u32 s{s_tmp}, s{s_tmp}, {WS_QF}")
    for j in range(4):
        a(f"s_add_u32 s{s_tmp2}, s{s_w}, {j}")
        a(f"s_and_b32 s{s_tmp2}, s{s_tmp2}, 3")
        a(f"s_mul_i32 s{56+j}, s{s_tmp2}, 12288")
        a(f"s_lshl_b32 s{s_tmp2}, s{s_tmp2}, 11")
        a(f"s_add_u32 s{s_q+j}, s{s_tmp}, s{s_tmp2}")
    a("s_waitcnt lgkmcnt(0)")
    srd(a, S_WS, 4, WS_SIZE)
    def ld(kt, part):
        vm.issue(f"buffer_load_dwordx4 {vr(KV[kt%3]+4*part,4)}, v{l16}, s[{S_WS}:{S_WS+3}], s{s_kt+kt} offen offset:{1024*part}", (kt, part))
    def ldq(j):
        for kk in range(2):
            vm.issue(f"buffer_load_dwordx4 {vr(Q+8*j+4*kk,4)}, v{l16}, s[{S_WS}:{S_WS+3}], s{s_q+j} offen offset:{1024*kk}", ("q", j))
    ld(0, 0); ld(0, 1); ldq(0); ldq(1); ld(0, 2); ld(0, 3); ldq(2); ldq(3)
    for p in range(4): ld(1, p)
    a(f"s_lshl_b32 s{s_of}, s{s_qb}, 2")
    a(f"s_add_u32 s{s_of}, s{s_of}, s{s_w}")
    a(f"s_lshl_b32 s{s_of}, s{s_of}, 15")
    a(f"s_lshl_b32 s{s_tmp}, s{s_hd}, 11")
    a(f"s_add_u32 s{s_of}, s{s_of}, s{s_tmp}")
    a(f"s_add_u32 s{s_of}, s{s_of}, {WS_OF}")
    for j in range(4): a(f"v_add_u32 v{4+j}, s{56+j}, v{l16}")
    def zq(j):
        vm.wait(("q", j))
        a("s_mov_b32 exec_lo, 0")
        a(f"v_mov_b32 v{Q+8*j+6}, 0\nv_mov_b32 v{Q+8*j+7}, 0")
        a("s_mov_b32 exec_lo, -1")
    def qk(i, kk):
        kt, j = divmod(i, 4)
        c = "0" if kk == 0 else vr(S[i%2], 16)
        a(f"v_mfma_f32_32x32x16_bf16 {vr(S[i%2],16)}, {vr(KV[kt%3]+4*kk,4)}, {vr(Q+8*j+4*kk,4)}, {c}")
    def pv(i, kk):
        kt, j = divmod(i, 4)
        c = "0" if (kt == 0 and kk == 0) else vr(O+16*j, 16)
        a(f"v_mfma_f32_32x32x16_bf16 {vr(O+16*j,16)}, {vr(KV[kt%3]+8+4*kk,4)}, {vr(P[i%2]+4*kk,4)}, {c}")
    def ex(i, q):
        s = S[i%2] + 4*q
        for r in range(4): a(f"v_exp_f32 v{s+r}, v{s+r}")
        a(f"v_cvt_pk_bf16_f32 v{P[i%2]+2*q}, v{s}, v{s+1}")
        a(f"v_cvt_pk_bf16_f32 v{P[i%2]+2*q+1}, v{s+2}, v{s+3}")
    zq(0)
    qk(0, 0); qk(0, 1)
    NS = 64
    for i in range(NS):
        kt, j = divmod(i, 4)
        if i < 3: zq(i + 1)
        if i + 1 < NS:
            if (i + 1) % 4 == 0: vm.wait(((i+1)//4, 1))
            qk(i + 1, 0)
        if kt + 2 < 16: ld(kt + 2, j)
        ex(i, 0)
        if i + 1 < NS: qk(i + 1, 1)
        ex(i, 1)
        if i >= 1:
            if (i - 1) % 4 == 0: vm.wait(((i-1)//4, 3))
            pv(i - 1, 0)
        ex(i, 2)
        if i >= 1: pv(i - 1, 1)
        ex(i, 3)
    pv(NS - 1, 0); pv(NS - 1, 1)
    for j in range(1, 4):
        for i in range(4):
            a(f"ds_write_b128 v{4+j}, {vr(O+16*j+4*i,4)} offset:{(j-1)*4096+1024*i}")
    a("s_waitcnt lgkmcnt(0)")
    a("s_barrier")
    T = 112
    for i in range(12):
        a(f"ds_read_b128 {vr(T+4*i,4)}, v4 offset:{1024*i}")
    for j in range(3):
        a(f"s_waitcnt lgkmcnt({8-4*j})")
        for r in range(16): a(f"v_add_f32 v{O+r}, v{O+r}, v{T+16*j+r}")
    lnorm, lfb = a.label("Lnorm"), a.label("Lfallback")
    def getl():
        a(f"v_mov_b32 v8, v{O+12}\nv_mov_b32 v9, v{O+12}")
        a("v_permlane32_swap_b32 v8, v9")
    getl()
    a(f"v_cmp_lt_f32 vcc, {fhex(2.0**-40)}, v9")
    a(f"s_mov_b32 s{s_tmp}, {fhex(2.0**40)}")
    a(f"v_cmp_gt_f32 s[60:61], s{s_tmp}, v9")
    a("s_and_b64 vcc, vcc, s[60:61]")
    a("s_cmp_eq_u64 vcc, -1")
    a(f"s_cbranch_scc0 {lfb}")
    a(f"{lnorm}:")
    a("v_rcp_f32 v9, v9")
    a(f"v_cmp_gt_u32 vcc, 32, v{l}")
    a("v_cndmask_b32 v10, 0, v9, vcc")
    for r in range(16): a(f"v_mul_f32 v{O+r}, v{O+r}, v{9 if r < 12 else 10}")
    for q in range(8): a(f"v_cvt_pk_bf16_f32 v{T+q}, v{O+2*q}, v{O+2*q+1}")
    for kk in range(2):
        a(f"buffer_store_dwordx4 {vr(T+4*kk,4)}, v{l16}, s[{S_WS}:{S_WS+3}], s{s_of} offen offset:{1024*kk}")
    a("s_endpgm")
    a(f"{lfb}:")
    K0 = KV[0]; Sx = S[0]; Px = P[0]; m = 11
    a(f"v_mov_b32 v{m}, 0xff800000")
    a(f"s_mov_b32 s{s_tmp}, s{s_kv0}")
    a(f"s_mov_b32 s{s_tmp2}, 64")
    l1 = a.label("Lfb1")
    a(f"{l1}:")
    for p in range(2):
        a(f"buffer_load_dwordx4 {vr(K0+4*p,4)}, v{l16}, s[{S_WS}:{S_WS+3}], s{s_tmp} offen offset:{1024*p}")
    a("s_waitcnt vmcnt(0)")
    a(f"v_mfma_f32_32x32x16_bf16 {vr(Sx,16)}, {vr(K0,4)}, {vr(Q,4)}, 0")
    a(f"v_mfma_f32_32x32x16_bf16 {vr(Sx,16)}, {vr(K0+4,4)}, {vr(Q+4,4)}, {vr(Sx,16)}")
    for q in range(8): a(f"v_max3_f32 v{m}, v{Sx+2*q}, v{Sx+2*q+1}, v{m}")
    a(f"s_add_u32 s{s_tmp}, s{s_tmp}, 4096")
    a(f"s_sub_u32 s{s_tmp2}, s{s_tmp2}, 1")
    a(f"s_cmp_lg_u32 s{s_tmp2}, 0")
    a(f"s_cbranch_scc1 {l1}")
    a(f"v_mov_b32 v8, v{m}\nv_mov_b32 v9, v{m}")
    a("v_permlane32_swap_b32 v8, v9")
    a(f"v_max_f32 v{m}, v8, v9")
    for r in range(16): a(f"v_mov_b32 v{O+r}, 0")
    a(f"s_mov_b32 s{s_tmp}, s{s_kv0}")
    a(f"s_mov_b32 s{s_tmp2}, 64")
    l2 = a.label("Lfb2")
    a(f"{l2}:")
    for p in range(4):
        a(f"buffer_load_dwordx4 {vr(K0+4*p,4)}, v{l16}, s[{S_WS}:{S_WS+3}], s{s_tmp} offen offset:{1024*p}")
    a("s_waitcnt vmcnt(0)")
    a(f"v_mfma_f32_32x32x16_bf16 {vr(Sx,16)}, {vr(K0,4)}, {vr(Q,4)}, 0")
    a(f"v_mfma_f32_32x32x16_bf16 {vr(Sx,16)}, {vr(K0+4,4)}, {vr(Q+4,4)}, {vr(Sx,16)}")
    for r in range(16): a(f"v_sub_f32 v{Sx+r}, v{Sx+r}, v{m}")
    for r in range(16): a(f"v_exp_f32 v{Sx+r}, v{Sx+r}")
    for q in range(8): a(f"v_cvt_pk_bf16_f32 v{Px+q}, v{Sx+2*q}, v{Sx+2*q+1}")
    a(f"v_mfma_f32_32x32x16_bf16 {vr(O,16)}, {vr(K0+8,4)}, {vr(Px,4)}, {vr(O,16)}")
    a(f"v_mfma_f32_32x32x16_bf16 {vr(O,16)}, {vr(K0+12,4)}, {vr(Px+4,4)}, {vr(O,16)}")
    a(f"s_add_u32 s{s_tmp}, s{s_tmp}, 4096")
    a(f"s_sub_u32 s{s_tmp2}, s{s_tmp2}, 1")
    a(f"s_cmp_lg_u32 s{s_tmp2}, 0")
    a.flush()
    a(f"s_cbranch_scc1 {l2}")
    getl()
    a("s_nop 3")
    a(f"s_branch {lnorm}")

def gen_conv(a):
    vm = VM(a); lg = LG(a)
    S_WS = 8
    s_w, s_cg, s_ch, s_kk, s_d, s_tmp, s_tmp2, s_chb, s_kt, s_xt = 20, 21, 22, 23, 24, 25, 26, 27, 28, 29
    CS = 4160; UOFF = 4*CS; CHSZ = UOFF + 96*80; EXCH = 49152
    l, l16 = 1, 2
    a("s_load_dwordx2 s[4:5], s[0:1], 120")
    a(f"v_and_b32 v{l}, 63, v0")
    a("v_lshrrev_b32 v3, 6, v0")
    a(f"v_readfirstlane_b32 s{s_w}, v3")
    a(f"v_lshlrev_b32 v{l16}, 4, v{l}")
    a(f"s_sub_u32 s{s_cg}, s2, {N_ATT}")
    a(f"s_lshr_b32 s{s_ch}, s{s_w}, 1")
    a(f"s_and_b32 s{s_kk}, s{s_w}, 1")
    a(f"s_lshl_b32 s{s_d}, s{s_cg}, 1")
    a(f"s_add_u32 s{s_d}, s{s_d}, s{s_ch}")
    a(f"s_mul_i32 s{s_chb}, s{s_ch}, {CHSZ}")
    a(f"s_mul_i32 s{s_kt}, s{s_d}, {KT_ROW}")
    a(f"s_add_u32 s{s_kt}, s{s_kt}, {WS_KT}")
    a(f"s_lshl_b32 s{s_tmp}, s{s_kk}, 2")
    a(f"s_add_u32 s{s_kt}, s{s_kt}, s{s_tmp}")
    a(f"s_lshl_b32 s{s_xt}, s{s_d}, 12")
    a(f"s_add_u32 s{s_xt}, s{s_xt}, {WS_XT}")
    a(f"s_lshl_b32 s{s_tmp}, s{s_kk}, 7")
    a(f"v_add_u32 v3, s{s_tmp}, v{l}")
    for q in range(3):
        a(f"v_add_u32 v4, {64*q}, v3")
        a("v_mul_u32_u24 v5, 13108, v4")
        a("v_lshrrev_b32 v5, 16, v5")
        a("v_sub_u32 v4, v4, v5")
        a(f"v_lshlrev_b32 v{8+q}, 4, v4")
    a("s_waitcnt lgkmcnt(0)")
    srd(a, S_WS, 4, WS_SIZE)
    a(f"s_mul_i32 s{s_tmp}, s{s_kk}, {2*CS}")
    a(f"s_add_u32 s{s_tmp}, s{s_tmp}, s{s_chb}")
    for c in range(2):
        a(f"s_add_u32 m0, s{s_tmp}, {c*CS}")
        a(f"s_add_u32 s{s_tmp2}, s{s_kt}, {c*(KT_VER+4)}")
        for i in range(4):
            a(f"buffer_load_dwordx4 v{l16}, s[{S_WS}:{S_WS+3}], s{s_tmp2} offen offset:{1024*i} lds")
    a("s_mov_b64 exec, 0xf")
    for c in range(2):
        a(f"s_add_u32 m0, s{s_tmp}, {c*CS+4096}")
        a(f"s_add_u32 s{s_tmp2}, s{s_kt}, {c*(KT_VER+4)+4096}")
        a(f"buffer_load_dwordx4 v{l16}, s[{S_WS}:{S_WS+3}], s{s_tmp2} offen lds")
    a("s_mov_b64 exec, -1")
    a(f"s_lshl_b32 s{s_tmp}, s{s_kk}, 11")
    a(f"s_add_u32 s{s_tmp}, s{s_tmp}, s{s_chb}")
    for q in range(3):
        a(f"s_add_u32 m0, s{s_tmp}, {UOFF+2560+1024*q}")
        a(f"buffer_load_dwordx4 v{8+q}, s[{S_WS}:{S_WS+3}], s{s_xt} offen lds")
    for e in range(4): a(f"v_mov_b32 v{12+e}, 0")
    a(f"s_mul_i32 s{s_tmp}, s{s_kk}, 1280")
    a(f"s_add_u32 s{s_tmp}, s{s_tmp}, s{s_chb}")
    a(f"v_add_u32 v3, s{s_tmp}, v{l16}")
    a(f"ds_write_b128 v3, v[12:15] offset:{UOFF}")
    a(f"ds_write_b128 v3, v[12:15] offset:{UOFF+256}")
    aA, aB = 16, 17
    a(f"v_and_b32 v3, 31, v{l}")
    a(f"v_lshrrev_b32 v4, 5, v{l}")
    a("v_and_b32 v5, 3, v3")
    a("v_sub_u32 v5, 3, v5")
    a(f"v_mul_u32_u24 v5, {CS}, v5")
    a("v_lshrrev_b32 v6, 2, v3")
    a("v_lshlrev_b32 v6, 3, v6")
    a("v_sub_u32 v5, v5, v6")
    a("v_lshl_add_u32 v5, v4, 4, v5")
    a(f"s_lshl_b32 s{s_tmp}, s{s_kk}, 5")
    a(f"s_add_u32 s{s_tmp}, s{s_tmp}, s{s_chb}")
    a(f"s_add_u32 s{s_tmp2}, s{s_tmp}, {2*2044-64*63}")
    a(f"v_add_u32 v{aA}, s{s_tmp2}, v5")
    a("v_mul_u32_u24 v5, 80, v3")
    a("v_lshl_add_u32 v5, v4, 4, v5")
    a(f"s_add_u32 s{s_tmp2}, s{s_tmp}, {UOFF+80}")
    a(f"v_add_u32 v{aB}, s{s_tmp2}, v5")
    a("v_lshlrev_b32 v5, 6, v3")
    a("v_lshl_add_u32 v18, v4, 4, v5")
    a("s_waitcnt vmcnt(0) lgkmcnt(0)")
    a("s_barrier")
    acc = [32, 48]
    NB = 4
    F = 64
    def rd(dl):
        r = F + 16 * (dl % NB)
        o1 = 64 * (63 - dl); o2 = 64 * (63 - dl - 32)
        lg.issue(f"ds_read_b64 {vr(r,2)}, v{aA} offset:{o1}", (dl, 0))
        lg.issue(f"ds_read_b64 {vr(r+2,2)}, v{aA} offset:{o1+8}", (dl, 0))
        lg.issue(f"ds_read_b128 {vr(r+8,4)}, v{aB} offset:{(31-dl)*80}", (dl, 0))
        lg.issue(f"ds_read_b128 {vr(r+12,4)}, v{aB} offset:{(31-dl)*80+2560}", (dl, 1))
        lg.issue(f"ds_read_b64 {vr(r+4,2)}, v{aA} offset:{o2}", (dl, 2))
        lg.issue(f"ds_read_b64 {vr(r+6,2)}, v{aA} offset:{o2+8}", (dl, 2))
    rd(0); rd(1)
    for dl in range(32):
        r = F + 16 * (dl % NB)
        lg.wait((dl, 2))
        c0 = "0" if dl == 0 else vr(acc[0], 16)
        c1 = "0" if dl == 0 else vr(acc[1], 16)
        a(f"v_mfma_f32_32x32x16_bf16 {vr(acc[0],16)}, {vr(r,4)}, {vr(r+8,4)}, {c0}")
        if dl + 2 < 32: rd(dl + 2)
        a(f"v_mfma_f32_32x32x16_bf16 {vr(acc[1],16)}, {vr(r,4)}, {vr(r+12,4)}, {c1}")
        a(f"v_mfma_f32_32x32x16_bf16 {vr(acc[1],16)}, {vr(r+4,4)}, {vr(r+8,4)}, {vr(acc[1],16)}")
    a(f"s_lshl_b32 s{s_tmp}, s{s_w}, 12")
    a(f"s_xor_b32 s{s_tmp2}, s{s_tmp}, 4096")
    a(f"v_add_u32 v3, s{s_tmp}, v{l16}")
    a(f"v_add_u32 v4, s{s_tmp2}, v{l16}")
    a(f"s_lshl_b32 s{s_tmp}, s{s_d}, 12")
    a(f"s_lshl_b32 s{s_tmp2}, s{s_kk}, 11")
    a(f"s_add_u32 s{s_tmp}, s{s_tmp}, s{s_tmp2}")
    a(f"s_add_u32 s{s_tmp}, s{s_tmp}, {WS_YT}")
    lk1 = a.label("Lck1")
    a.flush()
    a(f"s_cmp_eq_u32 s{s_kk}, 1")
    a(f"s_cbranch_scc1 {lk1}")
    for kk in range(2):
        if kk: a(f"{lk1}:")
        keep, give = acc[kk], acc[1-kk]
        for i in range(4): a(f"ds_write_b128 v3, {vr(give+4*i,4)} offset:{EXCH+1024*i}")
        a("s_waitcnt lgkmcnt(0)")
        a("s_barrier")
        for i in range(4): a(f"ds_read_b128 {vr(F+4*i,4)}, v4 offset:{EXCH+1024*i}")
        a("s_waitcnt lgkmcnt(0)")
        for r in range(16): a(f"v_add_f32 v{keep+r}, v{keep+r}, v{F+r}")
        pk = 96
        for q in range(8): a(f"v_cvt_pk_bf16_f32 v{pk+q}, v{keep+2*q}, v{keep+2*q+1}")
        for j in range(2):
            a(f"v_permlane32_swap_b32 v{pk+4*j}, v{pk+4*j+2}")
            a(f"v_permlane32_swap_b32 v{pk+4*j+1}, v{pk+4*j+3}")
        for j in range(2):
            a(f"buffer_store_dwordx4 {vr(pk+4*j,4)}, v18, s[{S_WS}:{S_WS+3}], s{s_tmp} offen offset:{32*j}")
        a("s_endpgm")

def gen_k2(a):
    kernel_head(a, "k2_kernel")
    lc, le = a.label("Lconv"), a.label("Lexit")
    a(f"s_cmp_ge_u32 s2, {N_ATT+N_CONV}")
    a(f"s_cbranch_scc1 {le}")
    a(f"s_cmp_ge_u32 s2, {N_ATT}")
    a(f"s_cbranch_scc1 {lc}")
    gen_attn(a)
    a(f"{lc}:")
    gen_conv(a)
    a(f"{le}:")
    a("s_endpgm")
    return ("k2_kernel", N_ATT+N_CONV, 256, K2_LDS, 208)
```

```python
from gen_common import *
K3_LDS = 61440
N_OUT = 224

def gen_k3(a):
    kernel_head(a, "k3_kernel")
    vm = VM(a); lg = LG(a)
    le = a.label("Lexit")
    a(f"s_cmp_ge_u32 s2, {N_OUT}")
    a(f"s_cbranch_scc1 {le}")
    S_WS, S_WO, S_OUT = 8, 12, 16
    s_w, s_tb, s_db, s_tmp, s_tmp2, s_tt, s_d0, s_of = 20, 21, 22, 23, 24, 25, 26, 27
    l, l16 = 1, 2
    a("s_load_dwordx2 s[4:5], s[0:1], 120")
    a("s_load_dwordx2 s[6:7], s[0:1], 16")
    a("s_load_dwordx2 s[28:29], s[0:1], 104")
    a(f"v_and_b32 v{l}, 63, v0")
    a("v_lshrrev_b32 v3, 6, v0")
    a(f"v_readfirstlane_b32 s{s_w}, v3")
    a(f"v_lshlrev_b32 v{l16}, 4, v{l}")
    a(f"s_and_b32 s{s_tb}, s2, 7")
    a(f"s_lshl_b32 s{s_tb}, s{s_tb}, 2")
    a(f"s_bfe_u32 s{s_tmp}, s2, 0x20003")
    a(f"s_add_u32 s{s_tb}, s{s_tb}, s{s_tmp}")
    a(f"s_lshr_b32 s{s_db}, s2, 5")
    a(f"s_and_b32 s{s_tmp}, s{s_w}, 1")
    a(f"s_lshl_b32 s{s_tt}, s{s_tb}, 1")
    a(f"s_add_u32 s{s_tt}, s{s_tt}, s{s_tmp}")
    a(f"s_lshr_b32 s{s_tmp}, s{s_w}, 1")
    a(f"s_lshl_b32 s{s_d0}, s{s_db}, 1")
    a(f"s_add_u32 s{s_d0}, s{s_d0}, s{s_tmp}")
    a(f"s_lshl_b32 s{s_d0}, s{s_d0}, 5")
    a(f"s_lshl_b32 s{s_of}, s{s_tt}, 15")
    a(f"s_add_u32 s{s_of}, s{s_of}, {WS_OF}")
    a(f"v_lshrrev_b32 v3, 3, v{l}")
    a("v_mul_u32_u24 v3, 896, v3")
    a(f"v_and_b32 v4, 7, v{l}")
    a(f"v_bfe_u32 v5, v{l}, 4, 1")
    a("v_lshlrev_b32 v5, 2, v5")
    a("v_xor_b32 v4, v4, v5")
    a("v_lshl_add_u32 v3, v4, 4, v3")
    a(f"s_mul_i32 s{s_tmp}, s{s_w}, {8*896}")
    a(f"s_lshl_b32 s{s_tmp2}, s{s_db}, 7")
    a(f"s_add_u32 s{s_tmp}, s{s_tmp}, s{s_tmp2}")
    a(f"v_add_u32 v3, s{s_tmp}, v3")
    a(f"s_lshl_b32 s30, s{s_w}, 10")
    a("s_waitcnt lgkmcnt(0)")
    srd(a, S_WS, 4, WS_SIZE)
    srd(a, S_WO, 6, 448*896)
    srd(a, S_OUT, 28, 2048*896)
    OFR = 64
    YF = 192
    def ldo(st):
        if st % 4 == 0: a(f"s_add_u32 s31, s{s_of}, {1024*st}")
        vm.issue(f"buffer_load_dwordx4 {vr(OFR+4*st,4)}, v{l16}, s[{S_WS}:{S_WS+3}], s31 offen offset:{1024*(st%4)}", ("o", st))
    def dma(i):
        a(f"s_add_u32 m0, s30, {4096*i}")
        a(f"s_mov_b32 s{s_tmp}, {32*896*i}")
        vm.issue(f"buffer_load_dwordx4 v3, s[{S_WO}:{S_WO+3}], s{s_tmp} offen lds", ("w", i))
    for i in range(8):
        dma(i); ldo(2*i); ldo(2*i+1)
    for i in range(8, 15):
        dma(i); ldo(2*i); ldo(2*i+1)
    ldo(30); ldo(31)
    row, h = 6, 7
    a(f"v_and_b32 v{row}, 31, v{l}")
    a(f"v_lshrrev_b32 v{h}, 5, v{l}")
    a(f"v_add_u32 v4, s{s_d0}, v{row}")
    a("v_lshlrev_b32 v4, 12, v4")
    a(f"v_lshl_add_u32 v4, v{h}, 4, v4")
    a(f"s_lshl_b32 s{s_tmp}, s{s_tt}, 6")
    a(f"s_add_u32 s{s_tmp}, s{s_tmp}, {WS_YT}")
    for kk in range(2):
        vm.issue(f"buffer_load_dwordx4 {vr(YF+4*kk,4)}, v4, s[{S_WS}:{S_WS+3}], s{s_tmp} offen offset:{32*kk}", "y")
    a(f"v_lshlrev_b32 v5, 2, v{row}")
    a(f"s_lshl_b32 s{s_tmp2}, s{s_tt}, 7")
    a(f"s_add_u32 s{s_tmp2}, s{s_tmp2}, {WS_G}")
    vm.issue(f"buffer_load_dword v8, v5, s[{S_WS}:{S_WS+3}], s{s_tmp2} offen", "y")
    aT = 9
    a(f"v_bfe_u32 v10, v{l}, 2, 2")
    a(f"v_bfe_u32 v11, v{l}, 4, 1")
    a(f"v_and_b32 v12, 3, v{l}")
    a("v_lshlrev_b32 v12, 3, v12")
    a("v_lshl_add_u32 v12, v11, 5, v12")
    a("v_lshl_add_u32 v12, v10, 7, v12")
    a(f"v_lshl_add_u32 v12, v{h}, 9, v12")
    a("v_lshrrev_b32 v10, 1, v10")
    a(f"s_lshr_b32 s{s_tmp}, s{s_w}, 1")
    a(f"v_xor_b32 v10, s{s_tmp}, v10")
    a(f"v_lshl_add_u32 v{aT}, v10, 6, v12")
    idf = 200
    a(f"v_and_b32 v10, 1, v{row}")
    a("v_lshlrev_b32 v10, 4, v10")
    a("v_mov_b32 v11, 0x3f80")
    a("v_lshlrev_b32 v10, v10, v11")
    a(f"v_lshrrev_b32 v11, 1, v{row}")
    a(f"v_lshlrev_b32 v12, 2, v{h}")
    a("v_sub_u32 v11, v11, v12")
    for q in range(8):
        k = (q & 3) + 8 * (q >> 2)
        a(f"v_cmp_eq_u32 vcc, {k}, v11")
        a(f"v_cndmask_b32 v{idf+q}, 0, v10, vcc")
    a(f"v_mul_u32_u24 v13, 896, v{row}")
    a(f"v_lshl_add_u32 v13, v{h}, 4, v13")
    a(f"s_mul_i32 s32, s{s_tt}, {32*896}")
    a(f"s_lshl_b32 s{s_tmp}, s{s_d0}, 1")
    a(f"s_add_u32 s32, s32, s{s_tmp}")
    acc, accy = 16, 32
    WF = 48
    def rdw(st):
        hd, kk = divmod(st, 2)
        o = (28*hd + 16*kk) * 128
        r = WF + 4 * (st % 4)
        lg.issue(f"ds_read_b64_tr_b16 {vr(r,2)}, v{aT} offset:{o}", st)
        lg.issue(f"ds_read_b64_tr_b16 {vr(r+2,2)}, v{aT} offset:{o+1024}", st)
    for half in range(2):
        vm.wait(("w", 7 if half == 0 else 14))
        a("s_barrier")
        s0 = 16 * half
        for st in range(s0, s0 + 3): rdw(st)
        for st in range(s0, s0 + 16):
            vm.wait(("o", st))
            lg.wait(st)
            c = "0" if st == 0 else vr(acc, 16)
            a(f"v_mfma_f32_32x32x16_bf16 {vr(acc,16)}, {vr(WF+4*(st%4),4)}, {vr(OFR+4*st,4)}, {c}")
            if st + 3 < s0 + 16: rdw(st + 3)
    vm.wait("y")
    a(f"v_mfma_f32_32x32x16_bf16 {vr(accy,16)}, {vr(YF,4)}, {vr(idf,4)}, 0")
    a(f"v_mfma_f32_32x32x16_bf16 {vr(accy,16)}, {vr(YF+4,4)}, {vr(idf+4,4)}, {vr(accy,16)}")
    for r in range(16): a(f"v_sub_f32 v{acc+r}, v{acc+r}, v{accy+r}")
    for r in range(16): a(f"v_fma_f32 v{acc+r}, v{acc+r}, v8, v{accy+r}")
    pk = 64
    for q in range(8): a(f"v_cvt_pk_bf16_f32 v{pk+q}, v{acc+2*q}, v{acc+2*q+1}")
    for j in range(2):
        a(f"v_permlane32_swap_b32 v{pk+4*j}, v{pk+4*j+2}")
        a(f"v_permlane32_swap_b32 v{pk+4*j+1}, v{pk+4*j+3}")
    for j in range(2):
        a(f"buffer_store_dwordx4 {vr(pk+4*j,4)}, v13, s[{S_OUT}:{S_OUT+3}], s32 offen offset:{32*j}")
    a(f"{le}:")
    a("s_endpgm")
    return ("k3_kernel", N_OUT, 256, K3_LDS, 208)
```

```python
import sys
from gen_common import *
import gen_k1, gen_k2, gen_k3, diag
CATS = [(0,0,224,4),(0,224,256,4),(0,256,480,4),(1,0,256,4),(1,256,480,4),(2,0,224,4)]
def build(path, dg=False):
    a = Asm()
    ks = [gen_k1.gen_k1(a), gen_k2.gen_k2(a), gen_k3.gen_k3(a)]
    if dg:
        a.lines = diag.instrument(a.lines, [k[0] for k in ks])
        ks = [(n, g, b, lds, 256) for (n, g, b, lds, v) in ks]
        ks.append(diag.gen_reduce(a, CATS, len(ks)))
    body = a.finish(True)
    hdr = open("cdna_kernels/" + NAME + ".s.ref").read().split("; Override launch")[0]
    out = hdr
    for (n, g, b, lds, v) in ks:
        out += f"; @launch kernel={n} grid=({g},1,1) block=({b},1,1) lds={lds}\n"
    out += '.amdgcn_target "amdgcn-amd-amdhsa--gfx950"\n.text\n' + body
    out += '.section .rodata,"a"\n'
    for (n, g, b, lds, v) in ks: out += kernel_desc(n, v)
    open(path, "w").write(out)
if __name__ == "__main__":
    build("cdna_kernels/" + NAME + ".s")
    build("diag.s", True)
```

```python
from gen_common import *
WS_ST = 0x1200000
def stamp(which, kidx):
    L = []
    if which == 0:
        L += ["s_memrealtime s[86:87]", "s_memtime s[90:91]", "s_load_dwordx2 s[88:89], s[0:1], 120",
              "v_lshrrev_b32 v254, 6, v0", "s_nop 0", "v_readfirstlane_b32 s85, v254", "s_nop 3",
              "s_lshl_b32 s85, s85, 4", "s_lshl_b32 s84, s2, 7", "s_add_u32 s84, s84, s85",
              f"s_add_u32 s84, s84, {WS_ST + kidx*65536}",
              "s_waitcnt lgkmcnt(0)",
              "s_mov_b32 s96, s88", "s_and_b32 s97, s89, 0xffff", f"s_mov_b32 s98, {WS_ST + 4*65536}", "s_mov_b32 s99, 0x20000",
              "s_mov_b32 s92, s86", "s_mov_b32 s93, s90"]
    else:
        L += ["s_waitcnt vmcnt(0) lgkmcnt(0)", "s_memrealtime s[86:87]", "s_memtime s[90:91]", "s_waitcnt lgkmcnt(0)",
              "s_mov_b64 exec, 1", "v_mov_b32 v248, s92", "v_mov_b32 v249, s86", "v_mov_b32 v250, s93", "v_mov_b32 v251, s90", "v_mov_b32 v255, 0",
              "buffer_store_dwordx4 v[248:251], v255, s[96:99], s84 offen", "s_endpgm"]
    return L
def instrument(lines, names):
    out = []; k = -1
    for l in lines:
        if l.endswith(":") and l[:-1] in names:
            k = names.index(l[:-1]); out.append(l); out += stamp(0, k)
        elif l == "s_endpgm":
            out += stamp(1, k)
        else: out.append(l)
    return out
def gen_reduce(a, cats, nk):
    kernel_head(a, "diag_kernel")
    le = a.label("Lx")
    a("s_cmp_ge_u32 s2, 1"); a(f"s_cbranch_scc1 {le}")
    a("s_load_dwordx4 s[4:7], s[0:1], 112")
    a("s_waitcnt lgkmcnt(0)")

    srd(a, 8, 4, 256); srd(a, 12, 6, WS_ST + 4*65536)
    for ci, (k, w0, w1, nw) in enumerate(cats):
        a("v_mov_b32 v2, -1\nv_mov_b32 v3, 0")
        n = (w1 - w0) * 8
        for base in range(0, n, 64):
            a(f"v_add_u32 v4, {base}, v0")
            a("v_and_b32 v5, 7, v4")
            a(f"v_cmp_gt_u32 vcc, {nw}, v5")
            a("v_lshlrev_b32 v4, 4, v4")
            a(f"s_mov_b32 s20, {WS_ST + k*65536 + w0*128}")
            a("buffer_load_dwordx2 v[6:7], v4, s[12:15], s20 offen")
            a("s_waitcnt vmcnt(0)")
            a("v_cndmask_b32 v6, -1, v6, vcc")
            a("v_cndmask_b32 v7, 0, v7, vcc")
            a("v_min_u32 v2, v2, v6\nv_max_u32 v3, v3, v7")
        a("v_not_b32 v2, v2")
        a(f"v_mov_b32 v8, {ci*8}")
        a("buffer_atomic_umax v2, v8, s[8:11], 0 offen")
        a("buffer_atomic_umax v3, v8, s[8:11], 0 offen offset:4")
        a("s_waitcnt vmcnt(0)")
    a(f"{le}:"); a("s_endpgm")
    return ("diag_kernel", 1, 64, 0, 16)
```
